```python
import torch

def _softmax(x, axis=-1):
    return torch.softmax(x, dim=axis)

def _gelu(x):
    return torch.nn.functional.gelu(x, approximate='tanh')

def _silu(x):
    return torch.nn.functional.silu(x)

def _sigmoid(x):
    return torch.sigmoid(x)

def _layernorm(x, axis=-1, eps=1e-05):
    m = x.mean(dim=axis, keepdim=True)
    v = x.var(dim=axis, keepdim=True, unbiased=False)
    return (x - m) / torch.sqrt(v + eps)

def _scatter_add(tgt, idx, src, axis=0):
    return tgt.clone().index_add_(axis, idx, src)

def _segment_sum(src, seg, n):
    out = torch.zeros((n,) + src.shape[1:], dtype=src.dtype)
    return out.index_add_(0, seg, src)

def _pad(x, pw):
    flat = tuple((v for pair in reversed(pw) for v in pair))
    return torch.nn.functional.pad(x, flat)
kernel_name = 'adaLN_cond__mha_block__glu_gated_glu__prompt'

def setup_inputs():

    _w = lambda a: (lambda t: t.to(torch.bfloat16) if t.is_floating_point() else t)(torch.as_tensor(a))

    def _A_setup():
        B, S, D, H = (1, 2048, 512, 32)
        return {'x': _w((lambda *s: torch.randn(*s, dtype=torch.bfloat16) * 0.05)(B, S, D)), 'wqkv': _w((lambda *s: torch.randn(*s, dtype=torch.bfloat16) * 0.05)(D, 3 * D)), 'wo': _w((lambda *s: torch.randn(*s, dtype=torch.bfloat16) * 0.05)(D, D))}
    _A_in = _A_setup()

    def _B_setup():
        B, S, D, F = (1, 2048, 512, 1376)
        return {'x': _w((lambda *s: torch.randn(*s, dtype=torch.bfloat16) * 0.05)(B, S, D)), 'w_gate': _w((lambda *s: torch.randn(*s, dtype=torch.bfloat16) * 0.05)(D, F)), 'w_up': _w((lambda *s: torch.randn(*s, dtype=torch.bfloat16) * 0.05)(D, F)), 'w_down': _w((lambda *s: torch.randn(*s, dtype=torch.bfloat16) * 0.05)(F, D))}
    _B_in = _B_setup()
    return {'A_x': _A_in['x'], 'A_wqkv': _A_in['wqkv'], 'A_wo': _A_in['wo'], 'B_x': _B_in['x'], 'B_w_gate': _B_in['w_gate'], 'B_w_up': _B_in['w_up'], 'B_w_down': _B_in['w_down'], 'c': _w((lambda *s: torch.randn(*s, dtype=torch.bfloat16) * 0.1)(1, 512) * 8.0), 'w_mod': _w((lambda *s: torch.randn(*s, dtype=torch.bfloat16) * 0.1)(512, 6 * 512) * 512 ** (-0.5) * 8.0)}

def reference(A_x, A_wqkv, A_wo, B_x, B_w_gate, B_w_up, B_w_down, c, w_mod):

    def _A_ref(x, wqkv, wo):
        B, S, D = x.shape
        H = 32
        Dh = D // H
        qkv = (lambda x, *d: x.permute(*d))((x @ wqkv).reshape(B, S, 3, H, Dh), 2, 0, 3, 1, 4)
        q, k, v = (qkv[0], qkv[1], qkv[2])
        scores = torch.einsum('bhqd,bhkd->bhqk', q, k) * Dh ** (-0.5)
        p = _softmax(scores, axis=-1)
        o = torch.einsum('bhqk,bhkd->bhqd', p, v)
        return (lambda x, *d: x.permute(*d))(o, 0, 2, 1, 3).reshape(B, S, D) @ wo

    def _B_ref(x, w_gate, w_up, w_down):
        g = torch.einsum('bsd,df->bsf', x, w_gate)
        u = torch.einsum('bsd,df->bsf', x, w_up)
        h = _sigmoid(g) * u
        return torch.einsum('bsf,fd->bsd', h, w_down)
    x = A_x
    mod = (_silu(c) @ w_mod).reshape(c.shape[0], 6, 1, -1)
    sa, ca, ga, sb, cb, gb = (mod[:, 0].clone(), mod[:, 1].clone(), mod[:, 2].clone(), mod[:, 3].clone(), mod[:, 4].clone(), mod[:, 5].clone())
    h = _layernorm(x, axis=-1) * (1 + ca) + sa
    x = x + ga * _A_ref(h, A_wqkv, A_wo)
    h = _layernorm(x, axis=-1) * (1 + cb) + sb
    x = x + gb * _B_ref(h, B_w_gate, B_w_up, B_w_down)
    return x
```

```python
import re

TRANS = ('v_exp_f32', 'v_log_f32', 'v_rcp_f32', 'v_rsq_f32', 'v_sqrt_f32', 'v_sin_f32', 'v_cos_f32')
DPPMODS = ('row_shr', 'row_shl', 'row_ror', 'row_bcast', 'quad_perm', 'wave_', 'row_mirror', 'row_half_mirror', 'row_newbcast')
_reg = re.compile(r'^(v|a|s)(\d+)$')
_rng = re.compile(r'^(v|a|s)\[(\d+):(\d+)\]$')


def regs_of(tok):
    tok = tok.strip()
    if tok.startswith('-'):
        tok = tok[1:]
    if tok.startswith('|') and tok.endswith('|'):
        tok = tok[1:-1]
    m = _reg.match(tok)
    if m:
        return {(m.group(1), int(m.group(2)))}
    m = _rng.match(tok)
    if m:
        return {(m.group(1), i) for i in range(int(m.group(2)), int(m.group(3)) + 1)}
    if tok == 'vcc':
        return {('s', 106), ('s', 107)}
    if tok == 'vcc_lo':
        return {('s', 106)}
    if tok == 'vcc_hi':
        return {('s', 107)}
    if tok == 'exec':
        return {('x', 0), ('x', 1)}
    if tok == 'm0':
        return {('m', 0)}
    return set()


class Ins:
    __slots__ = ('text', 'op', 'cls', 'wr', 'rd', 'passes', 'srcc', 'srcab', 'dpp', 'states', 'wide_store', 'data', 'lds_dma', 'label', 'target', 'sel')

    def __init__(self, text):
        self.text = text
        self.label = None
        self.target = None
        self.wr = set(); self.rd = set(); self.passes = 0
        self.srcc = set(); self.srcab = set(); self.dpp = False
        self.states = 1; self.wide_store = False; self.data = set(); self.lds_dma = False; self.sel = set()
        t = text.split(';')[0].strip()
        if t.endswith(':'):
            self.label = t[:-1]; self.cls = 'label'; self.op = ''; self.states = 0
            return
        if t == '' or t.startswith('.'):
            self.cls = 'dir'; self.op = ''; self.states = 0
            return
        parts = t.split(None, 1)
        op = parts[0]; self.op = op
        rest = parts[1] if len(parts) > 1 else ''
        ops = []; cur = ''; depth = 0
        for ch in rest:
            if ch == '[': depth += 1
            if ch == ']': depth -= 1
            if ch == ',' and depth == 0:
                ops.append(cur.strip()); cur = ''
            else:
                cur += ch
        if cur.strip():
            ops.append(cur.strip())
        mods = ''
        if ops:
            last = ops[-1].split(None, 1)
            if len(last) > 1:
                ops[-1] = last[0]; mods = last[1]
        R = [regs_of(o) for o in ops]
        allr = lambda l: set().union(*l) if l else set()
        if op.startswith('v_mfma'):
            self.cls = 'mfma'
            self.passes = 8 if '32x32x16' in op else 4
            self.wr = R[0]; self.srcab = R[1] | R[2]; self.srcc = R[3]; self.rd = self.srcab | self.srcc
        elif op.startswith('v_'):
            self.cls = 'trans' if op.split('_e')[0] in TRANS or op in TRANS else 'valu'
            self.dpp = any(d in mods for d in DPPMODS)
            if op.startswith('v_permlane') or op.startswith('v_swap'):
                self.wr = R[0] | R[1]; self.rd = R[0] | R[1]
            elif '_co_' in op:
                self.wr = R[0] | R[1]; self.rd = allr(R[2:])
            elif op.startswith('v_nop'):
                pass
            else:
                self.wr = R[0]; self.rd = allr(R[1:])
                if op.startswith(('v_fmac', 'v_pk_fmac', 'v_dot2c', 'v_writelane')) or self.dpp or 'dst_sel' in mods or 'op_sel' in mods:
                    self.rd |= R[0]
                if op.startswith('v_cndmask') and len(ops) == 3:
                    self.rd |= regs_of('vcc')
                if op.startswith(('v_readlane', 'v_writelane')) and len(R) > 2:
                    self.sel = R[2]
        elif op.startswith(('buffer_', 'global_', 'flat_')):
            self.cls = 'vmem'
            islds = (' lds' in (' ' + mods)) or '_lds_' in op
            self.lds_dma = islds
            if islds:
                self.rd = allr(R) | {('m', 0)}
            elif 'store' in op or 'atomic' in op:
                self.rd = allr(R)
                self.data = R[0] if op.startswith('buffer_') else R[1]
                self.wide_store = 'x3' in op or 'x4' in op
            else:
                self.wr = R[0]; self.rd = allr(R[1:])
                if 'd16' in op:
                    self.rd |= R[0]
        elif op.startswith('ds_'):
            self.cls = 'ds'
            if op.startswith(('ds_read', 'ds_bpermute', 'ds_permute', 'ds_swizzle')):
                self.wr = R[0]; self.rd = allr(R[1:])
            else:
                self.rd = allr(R)
        elif op.startswith('s_'):
            self.cls = 'salu'
            if op == 's_nop':
                self.states = int(ops[0], 0) + 1
            elif op.startswith(('s_cbranch', 's_branch')):
                self.target = ops[0]
            elif op.startswith(('s_cmp', 's_waitcnt', 's_barrier', 's_endpgm', 's_setprio', 's_sleep', 's_bitcmp')):
                self.rd = allr(R)
            else:
                self.wr = R[0] if R else set(); self.rd = allr(R[1:])
                if 'saveexec' in op:
                    self.wr |= regs_of('exec')
        else:
            raise ValueError('unknown instr ' + text)


def need(p, c):
    n = 0
    pv = p.cls in ('valu', 'trans')
    cv = c.cls in ('valu', 'trans')
    if pv:
        w = p.wr
        wv = {r for r in w if r[0] in 'va'}
        ws = {r for r in w if r[0] == 's'}
        if c.cls == 'mfma' and wv & c.rd: n = max(n, 2)
        if cv and c.dpp and wv & c.rd: n = max(n, 2)
        if cv and c.op.startswith('v_permlane') and wv & c.rd: n = max(n, 2)
        if cv and c.op.startswith(('v_readlane', 'v_readfirstlane')) and wv & c.rd: n = max(n, 1)
        if p.cls == 'trans' and c.cls in ('valu',) and wv & c.rd: n = max(n, 1)
        if p.cls == 'trans' and c.cls in ('vmem', 'ds') and wv & c.rd: n = max(n, 1)
        if ws:
            if c.cls == 'vmem' and ws & c.rd: n = max(n, 5)
            if cv and ws & c.rd: n = max(n, 2)
            if cv and ws & c.sel: n = max(n, 4)
            if c.cls == 'salu' and ws & c.rd: n = max(n, 1)
            if c.op.startswith('s_cbranch_vcc') and ws & regs_of('vcc'): n = max(n, 5)
        if ('sdwa' in p.text or 'dst_sel' in p.text or 'op_sel' in p.text) and cv and wv & (c.rd | c.wr): n = max(n, 1)
    if p.cls == 'mfma':
        big = 12 if p.passes == 8 else 8
        if c.cls == 'mfma':
            if p.wr & c.srcab: n = max(n, big)
            if p.wr & c.srcc and not (p.wr == c.srcc and p.passes == c.passes): n = max(n, big - 2)
            if p.wr & c.wr and not (p.wr == c.srcc and p.passes == c.passes): n = max(n, big - 2)
        elif c.cls in ('valu', 'trans', 'vmem', 'ds'):
            if p.wr & (c.rd | c.wr): n = max(n, big)
        if cv and p.srcc & c.wr: n = max(n, 7 if p.passes == 8 else 3)
    if p.cls == 'salu' and ('m', 0) in p.wr and c.lds_dma: n = max(n, 1)
    if p.cls == 'vmem' and p.wide_store and p.data & c.wr: n = max(n, 2)
    if p.cls == 'ds' and not p.wr and cv and (p.rd & c.wr) and ('b128' in p.op or 'b96' in p.op): n = max(n, 2)
    return n


class Asm:
    def __init__(self):
        self.lines = []

    def __call__(self, text):
        for l in text.strip('\n').split('\n'):
            l = l.strip()
            if l:
                self.lines.append(l)

    def label(self, name):
        self.lines.append(name + ':')

    def finalize(self):
        ins = [Ins(l) for l in self.lines]
        out = []
        hist = []
        saved = {}
        labelpos = {}

        def pad_for(c, hist):
            n = 0
            for p, age in hist:
                k = need(p, c) - age
                if k > n: n = k
            return n

        def advance(hist, i):
            h = [(p, a + i.states) for p, a in hist if a + i.states < 24]
            if i.cls not in ('label', 'dir'):
                h.append((i, 0))
            return h

        def emit_nop(n, hist):
            while n > 0:
                k = min(n, 16)
                x = Ins('s_nop %d' % (k - 1))
                out.append(x)
                hist = advance(hist, x)
                n -= k
            return hist

        for idx, c in enumerate(ins):
            if c.cls == 'label':
                labelpos[c.label] = idx
                if c.label in saved:
                    hist = hist + saved[c.label]
                out.append(c)
                continue
            if c.cls == 'dir':
                out.append(c)
                continue
            n = pad_for(c, hist)
            if c.target is not None and c.target in labelpos:
                h2 = advance(hist, c)
                extra = 0
                j = labelpos[c.target]
                steps = 0
                hh = h2
                while steps < 24 and j < len(ins):
                    d = ins[j]
                    if d.cls not in ('label', 'dir'):
                        k = pad_for(d, [(p, a) for p, a in hh if (p, a - 0) and p in [q for q, _ in h2]])
                        extra = max(extra, k)
                        steps += d.states
                        hh = advance(hh, d)
                        if d.op in ('s_branch', 's_endpgm'): break
                    j += 1
                n = max(n, extra)
            if n > 0:
                hist = emit_nop(n, hist)
            out.append(c)
            hist = advance(hist, c)
            if c.target is not None and c.target not in labelpos:
                saved[c.target] = saved.get(c.target, []) + list(hist)
            if c.op in ('s_branch', 's_endpgm'):
                hist = []
        return '\n'.join(('' if i.cls in ('label', 'dir') else '    ') + i.text for i in out) + '\n'
```

```python
from asmlib import Asm
MOD = 0x000000
ONEP = 0x004000
S12 = 0x008000
MODB = 0x00E000
ST2 = 0x010000
ONEPB = 0x050000
PGX = 0x060000
LN = 0x100000
PQKV = 0x300000
PWO = 0x480000
PGU = 0x500000
PDN = 0x800000
QO = 0xA00000
KV = 0xC00000
OO = 0x1000000
X1 = 0x1200000
X1S = 0x1400000
H2 = 0x1600000
WS_SIZE = 0x2000000

S_X, S_WQKV, S_WO, S_BX, S_WG, S_WU, S_WD, S_C, S_WMOD, S_OUT, S_DBG, S_WS = [16 + 2 * i for i in range(12)]


def prologue(a, name, nblocks):
    a('.p2align 8')
    a('.globl %s' % name)
    a('.type %s,@function' % name)
    a.label(name)
    a('s_cmp_ge_u32 s2, %d' % nblocks)
    a('s_cbranch_scc1 %s_end' % name)
    a('s_load_dwordx16 s[16:31], s[0:1], 0')
    a('s_load_dwordx8 s[32:39], s[0:1], 64')


def srd(a, dst, base, size):
    a('s_mov_b32 s%d, s%d' % (dst, base))
    a('s_and_b32 s%d, s%d, 0xffff' % (dst + 1, base + 1))
    a('s_mov_b32 s%d, 0x%x' % (dst + 2, size))
    a('s_mov_b32 s%d, 0x20000' % (dst + 3))


def epilogue(a, name):
    a.label(name + '_end')
    a('s_endpgm')


def descriptor(name, nvgpr, accum=None, nsgpr=96):
    if accum is None:
        accum = (nvgpr + 3) // 4 * 4
    return '''.p2align 6
.amdhsa_kernel %s
  .amdhsa_next_free_vgpr %d
  .amdhsa_next_free_sgpr %d
  .amdhsa_accum_offset %d
  .amdhsa_group_segment_fixed_size 0
  .amdhsa_kernarg_size 96
  .amdhsa_user_sgpr_count 2
  .amdhsa_user_sgpr_kernarg_segment_ptr 1
  .amdhsa_system_sgpr_workgroup_id_x 1
.end_amdhsa_kernel
''' % (name, nvgpr, nsgpr, accum)


def vr(b, n):
    return 'v[%d:%d]' % (b, b + n - 1)


def ar(b, n):
    return 'a[%d:%d]' % (b, b + n - 1)


def sr(b, n):
    return 's[%d:%d]' % (b, b + n - 1)


def bf16r(a, v, tmp=None):
    a('v_cvt_pk_bf16_f32 v%d, v%d, v%d' % (v, v, v))
    a('v_lshlrev_b32 v%d, 16, v%d' % (v, v))


def wave_sum(a, vs):
    for m in ('row_ror:8', 'row_ror:4', 'row_ror:2', 'row_ror:1'):
        for v in vs:
            a('v_add_f32_dpp v%d, v%d, v%d %s row_mask:0xf bank_mask:0xf' % (v, v, v, m))
    for v in vs:
        a('v_add_f32_dpp v%d, v%d, v%d row_bcast:15 row_mask:0xa bank_mask:0xf' % (v, v, v))
    for v in vs:
        a('v_add_f32_dpp v%d, v%d, v%d row_bcast:31 row_mask:0xc bank_mask:0xf' % (v, v, v))
```

```python
import sys, os
sys.path.insert(0, os.path.dirname(__file__))
from common import *
import importlib

HEAD = open('adaLN_cond__mha_block__glu_gated_glu__prompt.s.ref').read().split('; @launch')[0]


def build(names, out):
    a = Asm()
    ks = []
    for n in names:
        m = importlib.import_module(n)
        ks.append(getattr(m, 'gen_' + n)(a))
    txt = HEAD
    for k in ks:
        txt += '; @launch kernel=%s grid=(%d,1,1) block=(%d,1,1) lds=%d\n' % (k['name'], k['grid'], k['block'], k['lds'])
    txt += '.amdgcn_target "amdgcn-amd-amdhsa--gfx950"\n.text\n'
    txt += a.finalize()
    txt += '.section .rodata,"a"\n'
    for k in ks:
        txt += k['desc']
    open(out, 'w').write(txt)


if __name__ == '__main__':
    names = sys.argv[1].split(',') if len(sys.argv) > 1 else ['k0', 'k1', 'k2', 'k3', 'k4', 'k5']
    out = sys.argv[2] if len(sys.argv) > 2 else 'adaLN_cond__mha_block__glu_gated_glu__prompt.s'
    build(names, out)
```
